```python
import torch

def _softmax(x, axis=-1):
    return torch.softmax(x, dim=axis)
def _gelu(x):
    return torch.nn.functional.gelu(x, approximate="tanh")
def _silu(x):
    return torch.nn.functional.silu(x)
def _sigmoid(x):
    return torch.sigmoid(x)
def _layernorm(x, axis=-1, eps=1e-5):
    m = x.mean(dim=axis, keepdim=True)
    v = x.var(dim=axis, keepdim=True, unbiased=False)
    return (x - m) / torch.sqrt(v + eps)
def _scatter_add(tgt, idx, src, axis=0):
    return tgt.clone().index_add_(axis, idx, src)
def _segment_sum(src, seg, n):
    out = torch.zeros((n,) + src.shape[1:], dtype=src.dtype)
    return out.index_add_(0, seg, src)
def _pad(x, pw):
    flat = tuple(v for pair in reversed(pw) for v in pair)
    return torch.nn.functional.pad(x, flat)

kernel_name = 'recurrent_scan__gqa_block_cached__glu_gated_geglu__decode'

def setup_inputs():

    _w = (lambda a: (lambda t: t.to(torch.bfloat16) if t.is_floating_point() else t)(torch.as_tensor(a)))
    def _A_setup():
        B, Sq, D = 2, 1, 448
        Hq, Hkv, Sk, Dh = 16, 8, 32768, 256
        assert Hq % Hkv == 0, (Hq, Hkv)
        return {
            "x": _w((lambda *s: torch.randn(*s, dtype=torch.bfloat16) * 0.4)(B, Sq, D)),
            "k_cache": _w((lambda *s: torch.randn(*s, dtype=torch.bfloat16) * 1.6)(B, Hkv, Sk, Dh)),
            "v_cache": _w((lambda *s: torch.randn(*s, dtype=torch.bfloat16) * 1.6)(B, Hkv, Sk, Dh)),
            "wq": _w((lambda *s: torch.randn(*s, dtype=torch.bfloat16) * 1.6)(D, Hq * Dh) * (D ** -0.5)),
            "wo": _w((lambda *s: torch.randn(*s, dtype=torch.bfloat16) * 1.6)(Hq * Dh, D) * ((Hq * Dh) ** -0.5)),
        }
    _A_in = _A_setup()

    def _B_setup():
        B, S, Dm, Df = 2, 1, 448, 1792
        return {
            "x": _w((lambda *s: torch.randn(*s, dtype=torch.bfloat16) * 0.4)(B, S, Dm)),
            "w_gate": _w((lambda *s: torch.randn(*s, dtype=torch.bfloat16) * 1.6)(Dm, Df) * (Dm ** -0.5)),
            "w_up": _w((lambda *s: torch.randn(*s, dtype=torch.bfloat16) * 1.6)(Dm, Df) * (Dm ** -0.5)),
            "w_down": _w((lambda *s: torch.randn(*s, dtype=torch.bfloat16) * 1.6)(Df, Dm) * (Df ** -0.5)),
        }
    _B_in = _B_setup()

    return {
        "A_x": _A_in["x"],
        "A_k_cache": _A_in["k_cache"],
        "A_v_cache": _A_in["v_cache"],
        "A_wq": _A_in["wq"],
        "A_wo": _A_in["wo"],
        "B_x": _B_in["x"],
        "B_w_gate": _B_in["w_gate"],
        "B_w_up": _B_in["w_up"],
        "B_w_down": _B_in["w_down"],
    }

def reference(A_x, A_k_cache, A_v_cache, A_wq, A_wo, B_x, B_w_gate, B_w_up, B_w_down):
    def _A_ref(x, k_cache, v_cache, wq, wo):
        B, Sq, D = x.shape
        Hq, Dh = 16, 256
        Hkv = k_cache.shape[1]
        rep = Hq // Hkv
        q = (lambda x, *d: x.permute(*d))((x @ wq).reshape(B, Sq, Hq, Dh), 0, 2, 1, 3)
        k = (lambda x, n, axis: torch.repeat_interleave(x, n, dim=axis))(k_cache, rep, axis=1)
        v = (lambda x, n, axis: torch.repeat_interleave(x, n, dim=axis))(v_cache, rep, axis=1)
        scores = torch.einsum("bhqd,bhkd->bhqk", q, k) * (Dh ** -0.5)
        p = _softmax(scores, axis=-1)
        o = torch.einsum("bhqk,bhkd->bhqd", p, v)
        return (lambda x, *d: x.permute(*d))(o, 0, 2, 1, 3).reshape(B, Sq, Hq * Dh) @ wo

    def _B_ref(x, w_gate, w_up, w_down):
        g = torch.einsum("bsd,df->bsf", x, w_gate)
        u = torch.einsum("bsd,df->bsf", x, w_up)
        h = _gelu(g) * u
        return torch.einsum("bsf,fd->bsd", h, w_down)

    x = A_x
    xn = _layernorm(x, axis=-1)
    s = _A_ref(xn, A_k_cache, A_v_cache, A_wq, A_wo)
    g = _silu(_B_ref(xn, B_w_gate, B_w_up, B_w_down))
    return x + s * g
```

```python
import re
TRANS = ("v_exp_f32", "v_log_f32", "v_rcp_f32", "v_rsq_f32", "v_sqrt_f32", "v_sin_f32", "v_cos_f32")
def regs_of(op):
    op = op.strip()
    if op.startswith("-"): op = op[1:]
    m = re.fullmatch(r"abs\((.*)\)|\|(.*)\|", op)
    if m: op = m.group(1) or m.group(2)
    m = re.fullmatch(r"([vsa])(\d+)", op)
    if m: return {(m.group(1), int(m.group(2)))}
    m = re.fullmatch(r"([vsa])\[(\d+):(\d+)\]", op)
    if m: return {(m.group(1), i) for i in range(int(m.group(2)), int(m.group(3)) + 1)}
    if op == "vcc": return {("s", 106), ("s", 107)}
    if op == "exec": return {("s", 126), ("s", 127)}
    if op == "m0": return {("s", 124)}
    return set()

class Ins:
    def __init__(self, text):
        self.text = text
        t = text.split(";")[0].strip()
        parts = t.split(None, 1)
        self.mn = parts[0]
        rest = parts[1] if len(parts) > 1 else ""
        ops = []; depth = 0; cur = ""
        for ch in rest:
            if ch == "[": depth += 1
            if ch == "]": depth -= 1
            if ch == "," and depth == 0: ops.append(cur); cur = ""
            else: cur += ch
        if cur.strip(): ops.append(cur)
        self.mods = ""
        if ops:
            l = ops[-1].strip().split(None, 1)
            ops[-1] = l[0]
            self.mods = l[1] if len(l) > 1 else ""
        self.ops = [o.strip() for o in ops]
        mn = self.mn
        self.mfma = mn.startswith("v_mfma")
        self.valu = mn.startswith("v_") and not self.mfma
        self.vmem = mn.startswith("buffer_") or mn.startswith("global_")
        self.ds = mn.startswith("ds_")
        self.salu = mn.startswith("s_")
        self.dpp = "_dpp" in mn or "quad_perm" in self.mods or "row_" in self.mods
        self.perml = mn.startswith("v_permlane")
        self.trans = any(mn.startswith(x) for x in TRANS)
        self.rdlane = mn.startswith("v_readfirstlane") or mn.startswith("v_readlane")
        R = [regs_of(o) for o in self.ops]
        self.w = set(); self.r = set(); self.srcC = set(); self.srcAB = set(); self.stdata = set()
        if self.mfma:
            self.w = R[0]; self.srcAB = R[1] | R[2]; self.srcC = R[3]; self.r = self.srcAB | self.srcC
        elif self.valu:
            if self.perml:
                self.w = R[0] | R[1]; self.r = R[0] | R[1]
            elif "_co_" in mn:
                self.w = R[0] | R[1]; self.r = set().union(*R[2:])
            else:
                self.w = R[0]; self.r = set().union(*R[1:]) if len(R) > 1 else set()
                if mn.startswith("v_fmac") or mn.startswith("v_mac") or self.dpp: self.r |= R[0]
                if mn.startswith("v_cndmask") and len(R) == 3: self.r |= regs_of("vcc")
        elif self.vmem:
            if "load" in mn and "lds" not in self.mods.split():
                self.w = R[0]; self.r = set().union(*R[1:])
            elif "atomic" in mn and "sc0" in self.mods.split():
                self.w = R[0]; self.r = set().union(*R)
            else:
                self.r = set().union(*R)
                if "store" in mn and ("x3" in mn or "x4" in mn):
                    self.stdata = R[0] if mn.startswith("buffer_") else R[1]
        elif self.ds:
            if "read" in mn or "rtn" in mn or "permute" in mn or "swizzle" in mn:
                self.w = R[0]; self.r = set().union(*R[1:])
            else:
                self.r = set().union(*R)
        elif self.salu:
            pass
        self.states = 1
        if mn == "s_nop": self.states = int(self.ops[0], 0) + 1

def need(p, c):
    n = 0
    pv = {x for x in p.w if x[0] in "va"}; ps = {x for x in p.w if x[0] == "s"}
    if p.valu:
        if pv & c.r:
            if c.valu and c.dpp: n = max(n, 2)
            if c.perml: n = max(n, 2)
            if c.mfma: n = max(n, 2)
            if c.rdlane: n = max(n, 1)
            if p.trans and (c.valu or c.mfma): n = max(n, 1)
        if ps & c.r:
            if c.valu: n = max(n, 4 if c.rdlane else 2)
            if c.vmem: n = max(n, 5)
    if p.mfma:
        passes = 4 if "16x16x32" in p.mn else 8
        big = {4: 8, 8: 12}[passes]
        if c.mfma:
            if pv & c.srcAB: n = max(n, big)
            if pv & c.srcC and not (pv == c.srcC): n = max(n, {4: 6, 8: 10}[passes])
        elif c.valu or c.vmem or c.ds:
            if pv & (c.r | c.w): n = max(n, big)
        if c.valu and (p.srcC & c.w): n = max(n, {4: 3, 8: 7}[passes])
    if p.stdata and (p.stdata & c.w):
        n = max(n, 2 if c.valu else 1)
    return n

class Asm:
    def __init__(self):
        self.lines = []; self.hist = []
        self.nins = 0
    def raw(self, s): self.lines.append(s)
    def label(self, name):
        self.lines.append(name + ":")
    def I(self, text):
        for t in text.strip().split("\n"):
            t = t.strip()
            if not t or t.startswith(";"):
                if t: self.lines.append("  " + t)
                continue
            if t.endswith(":"):
                self.label(t[:-1]); continue
            c = Ins(t)
            dist = 0; pad = 0
            for p in reversed(self.hist[-24:]):
                k = need(p, c)
                if k > dist: pad = max(pad, k - dist)
                dist += p.states
                if dist >= 20: break
            while pad > 0:
                k = min(pad, 16)
                nop = Ins(f"s_nop {k-1}")
                self.lines.append(f"  s_nop {k-1}"); self.hist.append(nop); pad -= k
            self.lines.append("  " + t); self.hist.append(c); self.nins += 1
    def text(self): return "\n".join(self.lines) + "\n"
```

```python
import struct, sys, math
from asmlib import Asm
NAME = "recurrent_scan__gqa_block_cached__glu_gated_geglu__decode"
def f2u(x): return struct.unpack("<I", struct.pack("<f", x))[0]
def hx(x): return "0x%08x" % (x & 0xffffffff)

HEADER = open("cdna_kernels/" + NAME + ".s.ref").read().split("; Override launch")[0]

QBUF = 0x1000; PART = 0x10000; STAT = 0x90000; SP = 0xA0000; FP = 0xE0000; TSB = 0x180000; WS_SZ = 0x200000
CNT = 0; QL = 0x100; XN = 0x800; QP = 0x2800; HB = 0x2C00; PL = 0x3000; SL = 0x5000; RED = 0x5400; LDS_SZ = 0x6400
SPIN_MAX = 1 << 18

def gen(path, VM=6, ts=False, kvflags="nt", nocomp=0, nohelp=0, hx_=0):
    a = Asm(); I = a.I
    a.raw(HEADER.rstrip())
    a.raw(f"; @launch grid=(256,1,1) block=(512,1,1) lds={LDS_SZ}")
    a.raw('.amdgcn_target "amdgcn-amd-amdhsa--gfx950"')
    a.raw(".text"); a.raw(f".globl {NAME}_kernel"); a.raw(".p2align 8"); a.raw(f".type {NAME}_kernel,@function")
    a.raw(f"{NAME}_kernel:")
    nts = [0]
    def stamp(k):
        if ts: I(f"s_memrealtime s[{80+2*k}:{81+2*k}]")
    def dump_ts():
        if not ts: return
        I("s_waitcnt lgkmcnt(0)")
        I("s_lshl_b32 s4, s2, 3"); I("s_add_u32 s4, s4, s3"); I("s_lshl_b32 s4, s4, 5"); I(f"s_add_u32 s4, s4, {TSB}")
        I("s_mov_b64 exec, 1")
        for k in range(8): I(f"v_mov_b32 v{8+k}, s{80+2*k}")
        I("v_mov_b32 v1, 0")
        I("buffer_store_dwordx4 v[8:11], v1, s[40:43], s4 offen")
        I("buffer_store_dwordx4 v[12:15], v1, s[40:43], s4 offen offset:16")
    def srd(d, lo, n):
        I(f"s_mov_b32 s{d}, s{lo}"); I(f"s_mov_b32 s{d+1}, s{lo+1}"); I(f"s_mov_b32 s{d+2}, {hx(n)}"); I(f"s_mov_b32 s{d+3}, 0x00020000")

    I("s_cmp_ge_u32 s2, 256"); I("s_cbranch_scc1 L_end")
    I("s_load_dwordx16 s[16:31], s[0:1], 0"); I("s_load_dwordx8 s[32:39], s[0:1], 64")
    if ts:
        for k in range(8): I(f"s_mov_b64 s[{80+2*k}:{81+2*k}], 0")
    stamp(0)
    I("v_lshrrev_b32 v1, 6, v0"); I("v_and_b32 v0, 63, v0"); I("v_readfirstlane_b32 s3, v1")
    I("s_mov_b32 s64, 0x05040100"); I("s_mov_b32 s65, 0x07060302")
    I(f"s_mov_b32 s66, {hx(f2u(math.log2(math.e) / 16))}")
    I("s_mov_b32 s67, 0xffff0000")
    I("s_cmp_ge_u32 s3, 4"); I("s_cbranch_scc1 L_helper")

    vK, vV, vPM, vM, vL, vAL, vT = 1, 2, 3, 4, 5, 6, 7
    S = 8; A_ = 16; P = 24; Y = 32; D = 40; Q = 56; ACC = 72; KS = 104; VS = 168
    I("v_bfe_u32 v8, v0, 1, 2")
    I("v_bfe_u32 v9, v0, 3, 1")
    I("v_lshl_add_u32 v8, v8, 1, v9")
    I("v_lshlrev_b32 v8, 9, v8")
    I("v_lshrrev_b32 v9, 4, v0")
    I("v_and_b32 v10, 1, v0")
    I("v_lshl_add_u32 v10, v9, 1, v10")
    I(f"v_lshl_add_u32 v{vK}, v10, 4, v8")
    I(f"v_lshlrev_b32 v{vV}, 4, v0")
    I("s_lshl_b32 s68, s2, 20"); I("s_lshl_b32 s4, s3, 12"); I("s_add_u32 s68, s68, s4")
    I("s_waitcnt lgkmcnt(0)")
    srd(8, 18, 0x10000000); srd(12, 20, 0x10000000)
    def load_step(s, wait=True):
        u = (s % 16) // 4; i = s % 4
        if i == 0:
            I(f"s_add_u32 s69, s68, {u * 16384}")
        if wait: I(f"s_waitcnt vmcnt({VM - 1})")
        if s < 16:
            r = KS + 4 * s
            I(f"buffer_load_dwordx4 v[{r}:{r+3}], v{vK}, s[8:11], s69 offen offset:{i * 128} {kvflags}")
        else:
            r = VS + 4 * (s - 16)
            I(f"buffer_load_dwordx4 v[{r}:{r+3}], v{vV}, s[12:15], s69 offen offset:{i * 1024} {kvflags}")
    for s in range(VM): load_step(s, wait=False)
    srd(40, 38, WS_SZ)
    I("s_barrier")
    I("s_mov_b32 s70, 0xcccccccc"); I("s_mov_b32 s71, 0xcccccccc")
    I("v_bfe_u32 v8, v0, 4, 1"); I("v_bfe_u32 v9, v0, 1, 1")
    I("v_cmp_eq_u32 vcc, v8, v9"); I(f"v_cndmask_b32 v{vPM}, 0, -1, vcc")
    I(f"v_mov_b32 v{vM}, 0xff800000"); I(f"v_mov_b32 v{vL}, 0")
    for k in range(32): I(f"v_mov_b32 v{ACC + k}, 0")
    I("v_lshrrev_b32 v8, 4, v0"); I("v_lshl_add_u32 v8, v8, 1, v9"); I("v_lshlrev_b32 v8, 4, v8")
    I("v_and_b32 v9, 1, v0"); I("v_lshl_add_u32 v10, v9, 9, v8")
    for s in range(VM, 32): load_step(s)
    I("s_add_u32 s68, s68, 0x10000")
    stamp(1)
    I("s_barrier")
    stamp(2)
    for i in range(4): I(f"ds_read_b128 v[{Q+4*i}:{Q+4*i+3}], v10 offset:{QL + i * 128}")
    I("s_waitcnt lgkmcnt(0)")

    def qk(i):
        u, j = i // 4, i % 4
        c = "0" if j == 0 else f"v[{D+4*u}:{D+4*u+3}]"
        return f"v_mfma_f32_16x16x32_bf16 v[{D+4*u}:{D+4*u+3}], v[{KS+4*i}:{KS+4*i+3}], v[{Q+4*j}:{Q+4*j+3}], {c}"
    def softmax():
        L = []
        for u in range(4):
            L.append(f"v_cndmask_b32 v{A_+2*u}, v{D+4*u}, v{D+4*u+1}, s[70:71]")
            L.append(f"v_cndmask_b32 v{A_+2*u+1}, v{D+4*u+2}, v{D+4*u+3}, s[70:71]")
        for k in range(8):
            L.append(f"v_add_f32_dpp v{S+k}, v{A_+k}, v{A_+k} quad_perm:[2,3,0,1] row_mask:0xf bank_mask:0xf")
        for u in range(4): L.append(f"v_cvt_pk_bf16_f32 v{A_+u}, v{S+2*u}, v{S+2*u+1}")
        for u in range(4):
            L.append(f"v_lshlrev_b32 v{S+2*u}, 16, v{A_+u}")
            L.append(f"v_and_b32 v{S+2*u+1}, s67, v{A_+u}")
        x, y = A_, A_ + 1
        L.append(f"v_max3_f32 v{x}, v{S}, v{S+1}, v{S+2}")
        L.append(f"v_max3_f32 v{y}, v{S+3}, v{S+4}, v{S+5}")
        L.append(f"v_max3_f32 v{x}, v{x}, v{S+6}, v{S+7}")
        L.append(f"v_max3_f32 v{x}, v{x}, v{y}, v{vM}")
        L.append(f"v_mov_b32 v{y}, v{x}")
        L.append(f"v_permlane16_swap_b32 v{x}, v{y}")
        L.append(f"v_max_f32 v{x}, v{x}, v{y}")
        L.append(f"v_mov_b32 v{y}, v{x}")
        L.append(f"v_permlane32_swap_b32 v{x}, v{y}")
        L.append(f"v_max_f32 v{x}, v{x}, v{y}")
        L.append(f"v_sub_f32 v{y}, v{vM}, v{x}")
        L.append(f"v_mul_f32 v{y}, s66, v{y}")
        L.append(f"v_exp_f32 v{vAL}, v{y}")
        L.append(f"v_mov_b32 v{vM}, v{x}")
        L.append(f"v_mul_f32 v{vT}, s66, v{x}")
        for k in range(8): L.append(f"v_fma_f32 v{S+k}, v{S+k}, s66, -v{vT}")
        for k in range(8): L.append(f"v_exp_f32 v{S+k}, v{S+k}")
        L.append(f"v_mul_f32 v{vL}, v{vL}, v{vAL}")
        for u in range(4): L.append(f"v_cvt_pk_bf16_f32 v{P+2*u}, v{S+2*u}, v{S+2*u+1}")
        for u in range(4): L.append(f"v_mov_b32 v{P+2*u+1}, v{P+2*u}")
        for u in range(4): L.append(f"v_add_f32 v{A_+u}, v{S+2*u}, v{S+2*u+1}")
        for u in range(4): L.append(f"v_permlane16_swap_b32 v{P+2*u}, v{P+2*u+1}")
        L.append(f"v_add_f32 v{A_}, v{A_}, v{A_+1}")
        L.append(f"v_add_f32 v{A_+2}, v{A_+2}, v{A_+3}")
        for k in range(8): L.append(f"v_and_b32 v{P+k}, v{P+k}, v{vPM}")
        L.append(f"v_add_f32 v{A_}, v{A_}, v{A_+2}")
        L.append(f"v_add_f32 v{vL}, v{vL}, v{A_}")
        return L
    def perms(half, t):
        y = Y + 4 * (t & 1); sel = "s64" if (t & 1) == 0 else "s65"
        return [f"v_perm_b32 v{y+jj}, v{VS + 4*(8*half + 2*jj + 1) + (t >> 1)}, v{VS + 4*(8*half + 2*jj) + (t >> 1)}, {sel}" for jj in range(4)]
    def pvm(half, t):
        y = Y + 4 * (t & 1)
        return f"v_mfma_f32_16x16x32_bf16 v[{ACC+4*t}:{ACC+4*t+3}], v[{y}:{y+3}], v[{P+4*half}:{P+4*half+3}], v[{ACC+4*t}:{ACC+4*t+3}]"
    def rescale(t): return [f"v_mul_f32 v{ACC+4*t+i}, v{ACC+4*t+i}, v{vAL}" for i in range(4)]
    def pv_chunks(half):
        ch = []
        for t in range(8):
            c = perms(half, t)
            if half == 0: c = c + rescale(t)
            if t > 0: c.append(pvm(half, t - 1))
            ch.append(c)
        ch[7].append(pvm(half, 7))
        return ch
    I(f"s_waitcnt vmcnt(16)")
    for i in range(16): I(qk(i))
    for x in softmax(): I(x)
    I("s_mov_b32 s72, 15")
    a.label("L_loop")
    sm = softmax(); n = len(sm)
    chunks = [[] for _ in range(32)]
    a0 = max(0, VM - 9)
    for t, c in enumerate(pv_chunks(0)): chunks[a0 + t] += c
    b0 = max(a0 + 8, VM - 1)
    for t, c in enumerate(pv_chunks(1)): chunks[b0 + t] += c
    assert b0 + 8 <= 24
    qs = [max(16 + i // 2, i + VM) for i in range(16)]
    for i in range(16): chunks[qs[i]].append(qk(i))
    s0 = max(qs[-1] + 1, b0 + 8)
    assert s0 <= 31
    ns = 32 - s0
    for k in range(ns): chunks[s0 + k] += sm[(n * k) // ns:(n * (k + 1)) // ns]
    for s in range(32):
        load_step(s)
        for x in chunks[s]:
            if nocomp == 1: continue
            if nocomp == 2 and "mfma" in x: continue
            if nocomp == 3 and "mfma" not in x: continue
            I(x)
    I("s_add_u32 s68, s68, 0x10000")
    I("s_sub_u32 s72, s72, 1"); I("s_cmp_lg_u32 s72, 0"); I("s_cbranch_scc1 L_loop")
    stamp(3)
    I("s_waitcnt vmcnt(8)")
    for c in pv_chunks(0):
        for x in c: I(x)
    I(f"v_mov_b32 v{vT}, v{vL}"); I(f"v_permlane16_swap_b32 v{vL}, v{vT}"); I(f"v_add_f32 v{vL}, v{vL}, v{vT}")
    I(f"v_mov_b32 v{vT}, v{vL}"); I(f"v_permlane32_swap_b32 v{vL}, v{vT}"); I(f"v_add_f32 v{vL}, v{vL}, v{vT}")
    I("v_and_b32 v8, 1, v0"); I("v_lshlrev_b32 v8, 10, v8")
    I("v_bfe_u32 v9, v0, 1, 1"); I("v_lshl_add_u32 v8, v9, 9, v8")
    I("v_lshrrev_b32 v9, 4, v0"); I("v_lshl_add_u32 v8, v9, 7, v8")
    I("s_lshl_b32 s4, s3, 11"); I("v_add_u32 v8, s4, v8")
    I("s_lshl_b32 s4, s3, 4"); I("v_lshl_add_u32 v9, v0, 3, s4")
    I("s_mov_b64 exec, 3")
    I(f"ds_write_b64 v9, v[{vM}:{vL}] offset:{SL}")
    I("s_mov_b64 exec, -1")
    I("s_waitcnt vmcnt(0)")
    stamp(4)
    for c in pv_chunks(1):
        for x in c: I(x)
    I("s_mov_b32 exec_lo, 0x000f000f"); I("s_mov_b32 exec_hi, 0x000f000f")
    for t in range(8): I(f"ds_write_b128 v8, v[{ACC+4*t}:{ACC+4*t+3}] offset:{PL + 16*t}")
    I("s_mov_b64 exec, -1")
    I("s_waitcnt lgkmcnt(0)")
    I("s_barrier")
    stamp(5)
    I("s_cmp_ge_u32 s3, 2"); I("s_cbranch_scc1 L_sdone")
    I("s_lshl_b32 s4, s3, 10"); I("v_lshl_add_u32 v8, v0, 4, s4")
    I("s_lshl_b32 s4, s3, 3"); I("v_mov_b32 v9, s4")
    for w in range(4): I(f"ds_read_b64 v[{16+2*w}:{17+2*w}], v9 offset:{SL + 16*w}")
    for w in range(4): I(f"ds_read_b128 v[{32+4*w}:{35+4*w}], v8 offset:{PL + 2048*w}")
    I("s_lshl_b32 s5, s2, 11"); I(f"s_add_u32 s5, s5, {PART}")
    I("s_lshl_b32 s6, s2, 6"); I(f"s_add_u32 s6, s6, {STAT}")
    I("s_waitcnt lgkmcnt(0)" if ts else "s_waitcnt lgkmcnt(4)")
    I("v_max3_f32 v24, v16, v18, v20"); I("v_max_f32 v24, v24, v22")
    for w in range(4): I(f"v_sub_f32 v{16+2*w}, v{16+2*w}, v24")
    for w in range(4): I(f"v_mul_f32 v{16+2*w}, s66, v{16+2*w}")
    for w in range(4): I(f"v_exp_f32 v{16+2*w}, v{16+2*w}")
    I("v_mul_f32 v25, v16, v17")
    for w in range(1, 4): I(f"v_fmac_f32 v25, v{16+2*w}, v{17+2*w}")
    I("s_waitcnt lgkmcnt(0)")
    for i in range(4): I(f"v_mul_f32 v{28+i}, v16, v{32+i}")
    for w in range(1, 4):
        for i in range(4): I(f"v_fmac_f32 v{28+i}, v{16+2*w}, v{32+4*w+i}")
    for i in range(4): I(f"v_min_u32 v{28+i}, -2, v{28+i}")
    I("v_min_u32 v24, -2, v24"); I("v_min_u32 v25, -2, v25")
    I("buffer_store_dwordx4 v[28:31], v8, s[40:43], s5 offen sc1")
    I("s_mov_b64 exec, 1")
    I("buffer_store_dwordx2 v[24:25], v9, s[40:43], s6 offen sc1")
    stamp(6)
    a.label("L_sdone")
    dump_ts()
    I("s_endpgm")

    a.label("L_helper")
    if nohelp:
        I("s_waitcnt lgkmcnt(0)"); srd(40, 38, WS_SZ)
        I("s_barrier"); I("s_barrier"); I("s_barrier"); I("s_branch L_hdone")
    I("s_sub_u32 s73, s3, 4")
    I("v_and_b32 v1, 15, v0")
    I("v_lshrrev_b32 v2, 4, v0")
    I("v_and_b32 v3, 31, v0"); I("v_lshrrev_b32 v4, 5, v0")
    I("v_mul_u32_u24 v5, 896, v4"); I("v_lshl_add_u32 v5, v3, 5, v5")
    I("v_cmp_gt_u32 s[74:75], 28, v3")
    I("v_mov_b32 v6, 0x10000")
    I("v_cndmask_b32 v5, v6, v5, s[74:75]")
    I("v_mov_b32 v6, 0"); I(f"v_mov_b32 v7, {CNT}")
    I("ds_write_b32 v7, v6")
    I("s_waitcnt lgkmcnt(0)")
    srd(44, 16, 1792); srd(40, 38, WS_SZ)
    I("s_load_dword s76, s[38:39], 0")
    if hx_ & 8:
        I("s_mov_b32 s77, 0"); I("s_barrier"); I("s_branch L_b1")
    I("s_cmp_ge_u32 s2, 240"); I("s_cbranch_scc1 L_nojob")
    I("buffer_load_dwordx4 v[8:11], v5, s[44:47], 0 offen")
    I("buffer_load_dwordx4 v[12:15], v5, s[44:47], 0 offen offset:16")
    I("s_and_b32 s4, s2, 7"); I("s_bfe_u32 s5, s2, 0x40003")
    I("s_cmp_ge_u32 s2, 128"); I("s_cbranch_scc1 L_ffnaddr")
    I("s_lshl_b32 s77, s4, 4"); I("s_add_u32 s77, s77, s5")
    I("s_lshl_b32 s6, s77, 6")
    I("s_add_u32 s6, s22, s6"); I("s_addc_u32 s7, s23, 0")
    I("v_mov_b32 v16, s6"); I("v_mov_b32 v17, s7")
    I("v_lshlrev_b32 v18, 2, v1")
    I("s_mov_b32 s78, 8192")
    I("s_branch L_addrdone")
    a.label("L_ffnaddr")
    I("s_mul_i32 s77, s4, 14"); I("s_add_u32 s77, s77, s5")
    I("s_lshl_b32 s6, s77, 5")
    I("v_cmp_gt_u32 vcc, 8, v1")
    I("v_mov_b32 v16, s30"); I("v_mov_b32 v17, s31"); I("v_mov_b32 v18, s28"); I("v_mov_b32 v19, s29")
    I("v_cndmask_b32 v16, v16, v18, vcc"); I("v_cndmask_b32 v17, v17, v19, vcc")
    I("v_and_b32 v18, 7, v1"); I("v_lshl_add_u32 v18, v18, 2, s6")
    I("s_mov_b32 s78, 3584")
    a.label("L_addrdone")
    I("s_mov_b32 s79, 0")
    I("s_lshl_b32 s4, s73, 5"); I("v_lshl_add_u32 v19, v2, 3, s4")
    I("v_mul_lo_u32 v19, v19, s78"); I("v_add_u32 v18, v18, v19"); I("v_mov_b32 v19, 0")
    I("v_lshl_add_u64 v[16:17], v[18:19], 0, v[16:17]")
    I("s_mul_i32 s4, s78, 121"); I("s_mov_b32 s5, 0")
    W = 64
    for si in range(4):
        if si == 3:
            I("s_cmp_ge_u32 s73, 2"); I("s_cbranch_scc1 L_wdone")
        for j in range(8):
            I(f"global_load_dword v{W + 8*si + j}, v[16:17], off")
            if not (si == 3 and j == 7):
                I(f"v_lshl_add_u64 v[16:17], {'s[78:79]' if j < 7 else 's[4:5]'}, 0, v[16:17]")
    a.label("L_wdone")
    I("s_barrier")
    I("s_cmp_ge_u32 s73, 2"); I("s_cbranch_scc1 L_w24")
    I("s_waitcnt vmcnt(32)"); I("s_branch L_xrdy")
    a.label("L_w24"); I("s_waitcnt vmcnt(24)")
    a.label("L_xrdy")
    stamp(1)
    X = 20
    for k in range(8):
        I(f"v_lshlrev_b32 v{X+2*k}, 16, v{8+k}"); I(f"v_and_b32 v{X+2*k+1}, s67, v{8+k}")
    def halfsum(r, t):
        for sh in (8, 4, 2, 1):
            I(f"v_add_f32_dpp v{r}, v{r}, v{r} row_ror:{sh} row_mask:0xf bank_mask:0xf")
        I(f"v_mov_b32 v{t}, v{r}"); I(f"v_permlane16_swap_b32 v{r}, v{t}"); I(f"v_add_f32 v{r}, v{r}, v{t}")
    for k in range(8): I(f"v_add_f32 v{36+k}, v{X+2*k}, v{X+2*k+1}")
    for k in range(4): I(f"v_add_f32 v{36+k}, v{36+k}, v{40+k}")
    I("v_add_f32 v36, v36, v38"); I("v_add_f32 v37, v37, v39"); I("v_add_f32 v36, v36, v37")
    halfsum(36, 37)
    I(f"v_mul_f32 v36, {hx(f2u(1/448))}, v36")
    for k in range(16): I(f"v_sub_f32 v{40+k}, v{X+k}, v36")
    I("v_mul_f32 v38, v40, v40"); I("v_mul_f32 v39, v41, v41")
    for k in range(2, 16): I(f"v_fmac_f32 v{38 + (k & 1)}, v{40+k}, v{40+k}")
    I("v_add_f32 v38, v38, v39")
    I("v_cndmask_b32 v38, 0, v38, s[74:75]")
    halfsum(38, 37)
    I(f"v_mul_f32 v38, {hx(f2u(1/448))}, v38")
    I("v_cvt_pk_bf16_f32 v37, v36, v38")
    I("v_lshlrev_b32 v36, 16, v37")
    I("v_and_b32 v38, s67, v37")
    I(f"v_add_f32 v38, {hx(f2u(1e-5))}, v38")
    I("v_cvt_pk_bf16_f32 v38, v38, v38"); I("v_and_b32 v38, s67, v38")
    I("v_sqrt_f32 v38, v38")
    I("v_cvt_pk_bf16_f32 v38, v38, v38"); I("v_and_b32 v38, s67, v38")
    I("v_rcp_f32 v38, v38")
    for k in range(16): I(f"v_sub_f32 v{X+k}, v{X+k}, v36")
    for k in range(8): I(f"v_cvt_pk_bf16_f32 v{40+k}, v{X+2*k}, v{X+2*k+1}")
    for k in range(8):
        I(f"v_lshlrev_b32 v{X+2*k}, 16, v{40+k}"); I(f"v_and_b32 v{X+2*k+1}, s67, v{40+k}")
    for k in range(16): I(f"v_mul_f32 v{X+k}, v{X+k}, v38")
    for k in range(8): I(f"v_cvt_pk_bf16_f32 v{40+k}, v{X+2*k}, v{X+2*k+1}")
    I("s_lshl_b32 s4, s73, 11"); I("v_lshl_add_u32 v36, v0, 5, s4")
    I(f"ds_write_b128 v36, v[40:43] offset:{XN}"); I(f"ds_write_b128 v36, v[44:47] offset:{XN+16}")
    I("v_and_b32 v37, 1, v0"); I("v_lshlrev_b32 v37, 10, v37"); I("v_lshl_add_u32 v37, v2, 4, v37")
    I("s_mul_i32 s4, s73, 2112"); I("v_add_u32 v37, s4, v37")
    for si in range(4): I(f"ds_read_b128 v[{20+4*si}:{23+4*si}], v37 offset:{XN + 256*si}")
    E, O = 40, 44
    def kstep(si):
        for par, sel, y in ((0, "s64", 48), (1, "s65", 52)):
            for jj in range(4): I(f"v_perm_b32 v{y+jj}, v{W+8*si+2*jj+1}, v{W+8*si+2*jj}, {sel}")
        if si == 0: I("s_waitcnt lgkmcnt(0)")
        for d, y in ((E, 48), (O, 52)):
            c = "0" if si == 0 else f"v[{d}:{d+3}]"
            I(f"v_mfma_f32_16x16x32_bf16 v[{d}:{d+3}], v[{y}:{y+3}], v[{20+4*si}:{23+4*si}], {c}")
    I("s_waitcnt vmcnt(0)")
    stamp(2)
    for si in range(3): kstep(si)
    I("s_cmp_ge_u32 s73, 2"); I("s_cbranch_scc1 L_kdone")
    kstep(3)
    a.label("L_kdone")
    I("v_and_b32 v56, 1, v0"); I("v_lshl_add_u32 v56, v56, 2, v2"); I("v_lshlrev_b32 v56, 5, v56")
    I("s_lshl_b32 s4, s73, 8"); I("v_add_u32 v37, s4, v56")
    I("s_mov_b32 exec_lo, 0x00030003"); I("s_mov_b32 exec_hi, 0x00030003")
    I("s_nop 7")
    I(f"ds_write_b128 v37, v[{E}:{E+3}] offset:{QP}"); I(f"ds_write_b128 v37, v[{O}:{O+3}] offset:{QP+16}")
    I("s_mov_b64 exec, 1")
    I("v_mov_b32 v6, 1")
    I("ds_add_rtn_u32 v6, v7, v6")
    I("s_waitcnt lgkmcnt(0)")
    I("s_mov_b64 exec, -1")
    I("v_readfirstlane_b32 s4, v6")
    I("s_add_u32 s76, s76, 1")
    I("s_cmp_lg_u32 s4, 3"); I("s_cbranch_scc1 L_gather")
    for w in range(4):
        I(f"ds_read_b128 v[{20+8*w}:{23+8*w}], v56 offset:{QP + 256*w}"); I(f"ds_read_b128 v[{24+8*w}:{27+8*w}], v56 offset:{QP + 256*w + 16}")
    I("s_waitcnt lgkmcnt(0)")
    for k in range(8): I(f"v_add_f32 v{20+k}, v{20+k}, v{28+k}")
    for k in range(8): I(f"v_add_f32 v{36+k}, v{36+k}, v{44+k}")
    for k in range(8): I(f"v_add_f32 v{20+k}, v{20+k}, v{36+k}")
    I("s_cmp_ge_u32 s2, 128"); I("s_cbranch_scc1 L_ffnact")
    for r in range(4): I(f"v_cvt_pk_bf16_f32 v{28+2*r}, v{20+r}, v{24+r}")
    for r in range(4): I(f"v_mov_b32 v{29+2*r}, s76")
    I("v_and_b32 v36, 1, v0"); I("v_lshlrev_b32 v36, 14, v36"); I("v_lshl_add_u32 v36, v2, 5, v36")
    I("s_lshl_b32 s4, s77, 7"); I(f"s_add_u32 s4, s4, {QBUF}")
    I("s_mov_b32 exec_lo, 0x00030003"); I("s_mov_b32 exec_hi, 0x00030003")
    I("buffer_store_dwordx4 v[28:31], v36, s[40:43], s4 offen sc1")
    I("buffer_store_dwordx4 v[32:35], v36, s[40:43], s4 offen offset:16 sc1")
    I("s_mov_b64 exec, -1")
    stamp(3)
    I("s_branch L_gather")
    a.label("L_ffnact")
    for k in range(8): I(f"v_mov_b32 v{28+k}, v{20+k}")
    for k in range(8): I(f"v_permlane32_swap_b32 v{20+k}, v{28+k}")
    for k in range(8): I(f"v_cvt_pk_bf16_f32 v{36+k}, v{20+k}, v{28+k}")
    for k in range(8):
        I(f"v_lshlrev_b32 v{20+k}, 16, v{36+k}"); I(f"v_and_b32 v{28+k}, s67, v{36+k}")
    I(f"s_mov_b32 s4, {hx(f2u(0.044715))}"); I(f"s_mov_b32 s5, {hx(f2u(-2 * 0.7978845608028654 * math.log2(math.e)))}")
    for k in range(8): I(f"v_mul_f32 v{36+k}, v{20+k}, v{20+k}")
    for k in range(8): I(f"v_fma_f32 v{36+k}, v{36+k}, s4, 1.0")
    for k in range(8): I(f"v_mul_f32 v{36+k}, v{36+k}, v{20+k}")
    for k in range(8): I(f"v_mul_f32 v{36+k}, s5, v{36+k}")
    for k in range(8): I(f"v_exp_f32 v{36+k}, v{36+k}")
    for k in range(8): I(f"v_add_f32 v{36+k}, 1.0, v{36+k}")
    for k in range(8): I(f"v_rcp_f32 v{36+k}, v{36+k}")
    for k in range(8): I(f"v_mul_f32 v{36+k}, v{36+k}, v{20+k}")
    for k in range(8): I(f"v_cvt_pk_bf16_f32 v{36+k}, v{36+k}, v{36+k}")
    for k in range(8): I(f"v_and_b32 v{36+k}, s67, v{36+k}")
    for k in range(8): I(f"v_mul_f32 v{36+k}, v{36+k}, v{28+k}")
    for k in range(8): I(f"v_cvt_pk_bf16_f32 v{36+k}, v{36+k}, v{36+k}")
    for k in range(8): I(f"v_and_b32 v{36+k}, s67, v{36+k}")
    I("v_and_b32 v20, 1, v0"); I("v_lshlrev_b32 v20, 6, v20"); I("v_lshl_add_u32 v20, v2, 5, v20")
    I("s_mov_b32 exec_lo, 0x00030003"); I("s_mov_b32 exec_hi, 0")
    I(f"ds_write_b128 v20, v[36:39] offset:{HB}"); I(f"ds_write_b128 v20, v[40:43] offset:{HB+16}")
    I("s_mov_b64 exec, -1")
    I("s_branch L_gather")
    a.label("L_nojob")
    I("s_barrier")
    I("s_waitcnt lgkmcnt(0)")
    I("s_add_u32 s76, s76, 1")
    a.label("L_gather")
    I("s_cmp_lg_u32 s73, 3"); I("s_cbranch_scc1 L_b1")
    I("s_lshr_b32 s4, s2, 4"); I("s_lshl_b32 s4, s4, 11"); I(f"s_add_u32 s4, s4, {QBUF}")
    I("v_lshlrev_b32 v36, 5, v0"); I(f"s_mov_b32 s5, {SPIN_MAX}")
    a.label("L_qpoll")
    I("buffer_load_dwordx4 v[20:23], v36, s[40:43], s4 offen sc1")
    I("buffer_load_dwordx4 v[24:27], v36, s[40:43], s4 offen offset:16 sc1")
    I("s_waitcnt vmcnt(0)")
    I("v_xor_b32 v28, s76, v21"); I("v_xor_b32 v29, s76, v23"); I("v_xor_b32 v30, s76, v25"); I("v_xor_b32 v31, s76, v27")
    I("v_or3_b32 v28, v28, v29, v30"); I("v_or_b32 v28, v28, v31")
    I("v_cmp_ne_u32 vcc, 0, v28")
    I("s_cbranch_vccz L_qok")
    I("s_sub_u32 s5, s5, 1"); I("s_cmp_lg_u32 s5, 0"); I("s_cbranch_scc1 L_qpoll")
    a.label("L_qok")
    I("v_mov_b32 v21, v22"); I("v_mov_b32 v22, v24"); I("v_mov_b32 v23, v26")
    I("v_lshlrev_b32 v36, 4, v0")
    I(f"ds_write_b128 v36, v[20:23] offset:{QL}")
    stamp(4)
    a.label("L_b1")
    I("s_waitcnt lgkmcnt(0)")
    I("s_barrier")
    if hx_ & 4:
        I("s_barrier"); I("s_branch L_hdone")
    srd(48, 24, 4096 * 896); srd(52, 32, 1792 * 896); srd(56, 34, 1792); srd(60, 36, 256)
    I("s_bfe_u32 s4, s2, 0x60001")
    I("s_lshl_b32 s4, s4, 6")
    I("s_lshr_b32 s5, s73, 1"); I("s_lshl_b32 s5, s5, 5"); I("s_add_u32 s4, s4, s5")
    I("s_and_b32 s5, s73, 1"); I("s_lshl_b32 s5, s5, 2"); I("s_add_u32 s4, s4, s5")
    I("s_mul_i32 s4, s4, 896")
    I("s_and_b32 s5, s2, 1"); I("s_mul_i32 s5, s5, 448"); I("s_add_u32 s4, s4, s5")
    I("v_lshlrev_b32 v36, 3, v0")
    WO = 128; WP = 192
    for i in range(4):
        for q in range(4):
            k = 4 * i + q
            I(f"buffer_load_dwordx2 v[{WP+2*k}:{WP+2*k+1}], v36, s[48:51], s4 offen offset:{q * 896}")
        if i < 3: I(f"s_add_u32 s4, s4, {8 * 896}")
    I("s_cmp_lg_u32 s73, 0"); I("s_cbranch_scc1 L_wounpack")
    for k in range(4): I(f"v_mov_b32 v{20+k}, -1")
    I("v_lshlrev_b32 v37, 4, v0")
    I("s_lshl_b32 s5, s2, 11"); I(f"s_add_u32 s5, s5, {PART}")
    I("buffer_store_dwordx4 v[20:23], v37, s[40:43], s5 offen sc1")
    I("buffer_store_dwordx4 v[20:23], v37, s[40:43], s5 offen offset:1024 sc1")
    I("s_mul_i32 s6, s2, 896"); I(f"s_add_u32 s6, s6, {SP}")
    I("s_mov_b32 s96, s6")
    I("s_mov_b32 exec_lo, -1"); I("s_mov_b32 exec_hi, 0x00ffffff")
    I("buffer_store_dwordx4 v[20:23], v37, s[40:43], s6 offen sc1")
    I("s_mov_b64 exec, 1")
    I("s_lshl_b32 s5, s2, 6"); I(f"s_add_u32 s5, s5, {STAT}")
    I("buffer_store_dwordx4 v[20:23], v37, s[40:43], s5 offen sc1")
    I("s_mov_b64 exec, -1")
    I("s_cmp_lt_u32 s2, 128"); I("s_cbranch_scc1 L_nodown")
    I("s_cmp_ge_u32 s2, 240"); I("s_cbranch_scc1 L_nodown")
    I("s_mul_i32 s4, s77, 14336")
    WD = 64
    for c in range(16):
        I(f"buffer_load_dwordx4 v[{WD+4*c}:{WD+4*c+3}], v37, s[52:55], s4 offen offset:{(c % 4) * 896}")
        if c % 4 == 3 and c < 15: I(f"s_add_u32 s4, s4, {4 * 896}")
    I("v_mov_b32 v38, 0")
    H = 224
    for k in range(8): I(f"ds_read_b128 v[{H+4*k}:{H+4*k+3}], v38 offset:{HB + 16*k}")
    for k in range(16): I(f"v_mov_b32 v{40+k}, 0")
    I("s_waitcnt vmcnt(0) lgkmcnt(0)")
    for c in range(16):
        g4, r, par = c // 8, (c % 8) // 2, c % 2
        pos = 8 * g4 + 4 * par + r
        for k in range(4):
            I(f"v_lshlrev_b32 v{24+2*k}, 16, v{WD+4*c+k}"); I(f"v_and_b32 v{25+2*k}, s67, v{WD+4*c+k}")
        for b in range(2):
            for k in range(8): I(f"v_fmac_f32 v{40+8*b+k}, v{H+16*b+pos}, v{24+k}")
    I("s_mul_i32 s4, s77, 3584"); I(f"s_add_u32 s4, s4, {FP}")
    I("v_lshlrev_b32 v38, 5, v0")
    I("s_mov_b32 exec_lo, -1"); I("s_mov_b32 exec_hi, 0x00ffffff")
    for b in range(2):
        for hlf in range(2):
            I(f"buffer_store_dwordx4 v[{40+8*b+4*hlf}:{43+8*b+4*hlf}], v38, s[40:43], s4 offen offset:{b*1792 + 16*hlf} sc1")
    I("s_mov_b64 exec, -1")
    a.label("L_nodown")
    I("s_waitcnt vmcnt(0)")
    I("s_mov_b64 exec, 1")
    I("v_mov_b32 v20, 1"); I("v_mov_b32 v21, 0")
    stamp(3)
    if not (hx_ & 2): I("buffer_atomic_add v20, v21, s[60:63], 0 offen sc1")
    if hx_ & 3: I("s_branch L_cok")
    I(f"s_mov_b32 s5, {SPIN_MAX}")
    a.label("L_cpoll")
    I("s_sleep 8")
    I("buffer_load_dword v20, v21, s[60:63], 0 offen sc1")
    I("s_waitcnt vmcnt(0)")
    I("v_readfirstlane_b32 s4, v20")
    I("s_cmp_ge_u32 s4, 256"); I("s_cbranch_scc1 L_cok")
    I("s_sub_u32 s5, s5, 1"); I("s_cmp_lg_u32 s5, 0"); I("s_cbranch_scc1 L_cpoll")
    a.label("L_cok")
    stamp(4)
    I("s_cmp_lg_u32 s2, 0"); I("s_cbranch_scc1 L_noep")
    I("v_mov_b32 v20, s76")
    I("buffer_store_dword v20, v21, s[40:43], 0 offen sc1")
    a.label("L_noep")
    I("s_mov_b64 exec, -1")
    I("s_cmp_ge_u32 s2, 56"); I("s_cbranch_scc1 L_wounpack")
    I("s_cmp_ge_u32 s2, 28"); I("s_cselect_b32 s97, 1, 0")
    I("s_mul_i32 s4, s97, 28"); I("s_sub_u32 s98, s2, s4")
    I("v_lshrrev_b32 v20, 2, v0"); I("v_and_b32 v21, 3, v0")
    I("v_mul_u32_u24 v22, 3584, v20"); I("v_lshl_add_u32 v22, v21, 4, v22")
    I("s_mul_i32 s4, s97, 1792"); I("s_lshl_b32 s5, s98, 6"); I("s_add_u32 s4, s4, s5"); I(f"s_add_u32 s4, s4, {FP}")
    for k in range(7):
        I(f"buffer_load_dwordx4 v[{64+4*k}:{67+4*k}], v22, s[40:43], s4 offen sc1")
        if k < 6: I(f"s_add_u32 s4, s4, {16 * 3584}")
    I("s_mul_i32 s99, s97, 896"); I("s_lshl_b32 s5, s98, 5"); I("s_add_u32 s99, s99, s5")
    I("v_lshlrev_b32 v61, 3, v21")
    I("buffer_load_dwordx2 v[62:63], v61, s[44:47], s99 offen")
    I("v_mul_u32_u24 v60, 1792, v20"); I("v_lshl_add_u32 v60, v21, 4, v60")
    I(f"s_mul_i32 s100, s97, {64*1792}"); I("s_lshl_b32 s5, s98, 6"); I("s_add_u32 s100, s100, s5"); I(f"s_add_u32 s100, s100, {SP}")
    I("s_waitcnt vmcnt(0)")
    for k in range(1, 7):
        for i in range(4): I(f"v_add_f32 v{64+i}, v{64+i}, v{64+4*k+i}")
    def red16(regs, t):
        for sh in (4, 8):
            for r in regs: I(f"v_add_f32_dpp v{r}, v{r}, v{r} row_ror:{sh} row_mask:0xf bank_mask:0xf")
        for sw in ("v_permlane16_swap_b32", "v_permlane32_swap_b32"):
            for k, r in enumerate(regs): I(f"v_mov_b32 v{t+k}, v{r}")
            for k, r in enumerate(regs): I(f"{sw} v{r}, v{t+k}")
            for k, r in enumerate(regs): I(f"v_add_f32 v{r}, v{r}, v{t+k}")
    red16([64, 65, 66, 67], 68)
    def rbf(regs):
        for r in regs: I(f"v_cvt_pk_bf16_f32 v{r}, v{r}, v{r}")
        for r in regs: I(f"v_and_b32 v{r}, s67, v{r}")
    rbf([64, 65, 66, 67])
    I(f"s_mov_b32 s4, {hx(f2u(-math.log2(math.e)))}")
    for i in range(4): I(f"v_mul_f32 v{68+i}, s4, v{64+i}")
    for i in range(4): I(f"v_exp_f32 v{68+i}, v{68+i}")
    for i in range(4): I(f"v_add_f32 v{68+i}, 1.0, v{68+i}")
    for i in range(4): I(f"v_rcp_f32 v{68+i}, v{68+i}")
    for i in range(4): I(f"v_mul_f32 v{56+i}, v{68+i}, v{64+i}")
    rbf([56, 57, 58, 59])
    I("v_lshlrev_b32 v52, 16, v62"); I("v_and_b32 v53, s67, v62"); I("v_lshlrev_b32 v54, 16, v63"); I("v_and_b32 v55, s67, v63")
    a.label("L_wounpack")
    I("s_waitcnt vmcnt(0)")
    for k in range(32):
        I(f"v_lshlrev_b32 v{WO+2*k}, 16, v{WP+k}"); I(f"v_and_b32 v{WO+2*k+1}, s67, v{WP+k}")
    I("v_lshrrev_b32 v20, 2, v0"); I("v_and_b32 v21, 3, v0")
    I("v_lshlrev_b32 v22, 11, v20"); I("v_lshl_add_u32 v22, v21, 4, v22")
    I("v_lshlrev_b32 v23, 6, v20")
    I("s_and_b32 s4, s2, 0xf0"); I("s_lshl_b32 s5, s4, 11"); I(f"s_add_u32 s5, s5, {PART}")
    I("s_bfe_u32 s6, s2, 0x30001"); I("s_lshl_b32 s7, s6, 8"); I("s_add_u32 s5, s5, s7")
    I("s_lshl_b32 s7, s73, 6"); I("s_add_u32 s5, s5, s7")
    I("s_lshl_b32 s4, s4, 6"); I(f"s_add_u32 s4, s4, {STAT}")
    I("s_lshr_b32 s6, s6, 2"); I("s_lshl_b32 s6, s6, 3"); I("s_add_u32 s4, s4, s6")
    I(f"s_mov_b32 s7, {SPIN_MAX}")
    I("s_lshl_b32 s6, s73, 10"); I("v_lshl_add_u32 v36, v0, 4, s6")
    I("v_lshlrev_b32 v37, 4, v0")
    I("s_barrier")
    stamp(5)
    if hx_ & 16: I("s_branch L_hdone")
    a.label("L_ppoll")
    I("buffer_load_dwordx4 v[24:27], v22, s[40:43], s5 offen sc1")
    I("buffer_load_dwordx2 v[28:29], v23, s[40:43], s4 offen sc1")
    I("s_waitcnt vmcnt(0)")
    I("v_max3_u32 v30, v24, v25, v26"); I("v_max3_u32 v31, v27, v28, v29"); I("v_max_u32 v30, v30, v31")
    I("v_cmp_eq_u32 vcc, -1, v30")
    I("s_cbranch_vccz L_pok")
    I("s_sub_u32 s7, s7, 1"); I("s_cmp_lg_u32 s7, 0"); I("s_cbranch_scc1 L_ppoll")
    a.label("L_pok")
    stamp(6)
    I("v_max_f32_dpp v30, v28, v28 row_ror:4 row_mask:0xf bank_mask:0xf")
    I("v_max_f32_dpp v30, v30, v30 row_ror:8 row_mask:0xf bank_mask:0xf")
    I("v_mov_b32 v31, v30"); I("v_permlane16_swap_b32 v30, v31"); I("v_max_f32 v30, v30, v31")
    I("v_mov_b32 v31, v30"); I("v_permlane32_swap_b32 v30, v31"); I("v_max_f32 v30, v30, v31")
    I("v_sub_f32 v28, v28, v30"); I("v_mul_f32 v28, s66, v28"); I("v_exp_f32 v28, v28")
    for i in range(4): I(f"v_mul_f32 v{24+i}, v{24+i}, v28")
    I("v_mul_f32 v28, v28, v29")
    red16([24, 25, 26, 27, 28], 40)
    I("v_rcp_f32 v28, v28")
    for i in range(4): I(f"v_mul_f32 v{24+i}, v{24+i}, v28")
    rbf([24, 25, 26, 27])
    for c in range(4): I(f"v_mov_b32 v{32+c}, 0")
    for i in range(4):
        for q in range(4):
            k = 4 * i + q
            for c in range(4):
                I(f"v_fmac_f32_dpp v{32+c}, v{24+i}, v{WO+4*k+c} quad_perm:[{q},{q},{q},{q}] row_mask:0xf bank_mask:0xf")
    I(f"ds_write_b128 v36, v[32:35] offset:{RED}")
    I("s_waitcnt lgkmcnt(0)")
    I("s_barrier")
    I("s_cmp_lg_u32 s73, 0"); I("s_cbranch_scc1 L_hdone")
    for w in range(1, 4): I(f"ds_read_b128 v[{36+4*w}:{39+4*w}], v37 offset:{RED + 1024*w}")
    I("s_waitcnt lgkmcnt(0)")
    for c in range(4): I(f"v_add_f32 v{32+c}, v{32+c}, v{40+c}")
    for c in range(4): I(f"v_add_f32 v{44+c}, v{44+c}, v{48+c}")
    for c in range(4): I(f"v_add_f32 v{32+c}, v{32+c}, v{44+c}")
    for c in range(4): I(f"v_min_u32 v{32+c}, -2, v{32+c}")
    I("s_mov_b32 exec_lo, -1"); I("s_mov_b32 exec_hi, 0x00ffffff")
    I("buffer_store_dwordx4 v[32:35], v37, s[40:43], s96 offen sc1")
    I("s_mov_b64 exec, -1")
    I("s_cmp_ge_u32 s2, 56"); I("s_cbranch_scc1 L_hdone")
    I(f"s_mov_b32 s7, {SPIN_MAX}")
    I(f"s_add_u32 s4, s100, {16*1792}"); I(f"s_add_u32 s5, s100, {32*1792}"); I(f"s_add_u32 s6, s100, {48*1792}")
    a.label("L_fpoll")
    for k, sr in enumerate(("s100", "s4", "s5", "s6")):
        I(f"buffer_load_dwordx4 v[{64+4*k}:{67+4*k}], v60, s[40:43], {sr} offen sc1")
    I("s_waitcnt vmcnt(0)")
    for k in range(5): I(f"v_max3_u32 v{80+k}, v{64+3*k}, v{65+3*k}, v{66+3*k}")
    I("v_max3_u32 v80, v80, v81, v82"); I("v_max3_u32 v83, v83, v84, v79"); I("v_max_u32 v80, v80, v83")
    I("v_cmp_eq_u32 vcc, -1, v80")
    I("s_cbranch_vccz L_fok")
    I("s_sub_u32 s7, s7, 1"); I("s_cmp_lg_u32 s7, 0"); I("s_cbranch_scc1 L_fpoll")
    a.label("L_fok")
    stamp(7)
    for i in range(4): I(f"v_add_f32 v{64+i}, v{64+i}, v{68+i}")
    for i in range(4): I(f"v_add_f32 v{72+i}, v{72+i}, v{76+i}")
    for i in range(4): I(f"v_add_f32 v{64+i}, v{64+i}, v{72+i}")
    red16([64, 65, 66, 67], 68)
    rbf([64, 65, 66, 67])
    for i in range(4): I(f"v_mul_f32 v{64+i}, v{64+i}, v{56+i}")
    rbf([64, 65, 66, 67])
    for i in range(4): I(f"v_add_f32 v{64+i}, v{64+i}, v{52+i}")
    I("v_cvt_pk_bf16_f32 v64, v64, v65"); I("v_cvt_pk_bf16_f32 v65, v66, v67")
    I("s_mov_b64 exec, 15")
    I("buffer_store_dwordx2 v[64:65], v61, s[56:59], s99 offen")
    a.label("L_hdone")
    dump_ts()
    a.label("L_end")
    I("s_endpgm")
    a.raw('.section .rodata,"a"'); a.raw(".p2align 6"); a.raw(f".amdhsa_kernel {NAME}_kernel")
    for l in ("next_free_vgpr 256", "next_free_sgpr 102", "accum_offset 256", "group_segment_fixed_size 0", "kernarg_size 96",
              "user_sgpr_count 2", "user_sgpr_kernarg_segment_ptr 1", "system_sgpr_workgroup_id_x 1"):
        a.raw("  .amdhsa_" + l)
    a.raw(".end_amdhsa_kernel")
    open(path, "w").write(a.text())
    return a

if __name__ == "__main__":
    gen("k4_base_ts.s", VM=6, ts=True)
    for x in (1, 2, 4, 8, 16, 8+16, 2+16, 2+8+16):
        gen(f"k4_hx{x}.s", VM=6, hx_=x)
```
